```python
import torch

def _softmax(x, axis=-1):
    return torch.softmax(x, dim=axis)
def _gelu(x):
    return torch.nn.functional.gelu(x, approximate="tanh")
def _silu(x):
    return torch.nn.functional.silu(x)
def _sigmoid(x):
    return torch.sigmoid(x)
def _layernorm(x, axis=-1, eps=1e-5):
    m = x.mean(dim=axis, keepdim=True)
    v = x.var(dim=axis, keepdim=True, unbiased=False)
    return (x - m) / torch.sqrt(v + eps)
def _scatter_add(tgt, idx, src, axis=0):
    return tgt.clone().index_add_(axis, idx, src)
def _segment_sum(src, seg, n):
    out = torch.zeros((n,) + src.shape[1:], dtype=src.dtype)
    return out.index_add_(0, seg, src)
def _pad(x, pw):
    flat = tuple(v for pair in reversed(pw) for v in pair)
    return torch.nn.functional.pad(x, flat)

kernel_name = 'interleave_layers__ssm_conv_h3__dense_activation_mish__prompt'

def setup_inputs():

    _w = (lambda a: (lambda t: t.to(torch.bfloat16) if t.is_floating_point() else t)(torch.as_tensor(a)))
    def _A_setup():
        B, S, D = 1, 2048, 512
        ks = 4
        return {
            "q": _w((lambda *s: torch.randn(*s, dtype=torch.bfloat16) * 0.05)(B, S, D)),
            "k": _w((lambda *s: torch.randn(*s, dtype=torch.bfloat16) * 0.2)(B, S, D)),
            "v": _w((lambda *s: torch.randn(*s, dtype=torch.bfloat16) * 0.2)(B, S, D)),
            "shift_k": _w((lambda *s: torch.randn(*s, dtype=torch.bfloat16) * 0.2)(D, ks) * 0.5),
            "ssm_k": _w((lambda *s: torch.randn(*s, dtype=torch.bfloat16) * 0.4)(D, S) * (1.0 / S ** 0.5)),
            "ssm_D": _w((lambda *s: torch.randn(*s, dtype=torch.bfloat16) * 0.2)(D)),
        }
    _A_in = _A_setup()

    def _B_setup():
        B, S, D, F = 1, 2048, 512, 1792
        return {
            "x": _w((lambda *s: torch.randn(*s, dtype=torch.bfloat16) * 0.05)(B, S, D)),
            "w1": _w((lambda *s: torch.randn(*s, dtype=torch.bfloat16) * 0.4)(D, F) * (D ** -0.5)),
            "b1": _w((lambda *s: torch.randn(*s, dtype=torch.bfloat16) * 0.1)(F)),
            "w2": _w((lambda *s: torch.randn(*s, dtype=torch.bfloat16) * 0.1)(F, D) * (F ** -0.5)),
        }
    _B_in = _B_setup()

    return {
        "A_q": _A_in["q"],
        "A_k": _A_in["k"],
        "A_v": _A_in["v"],
        "A_shift_k": _A_in["shift_k"],
        "A_ssm_k": _A_in["ssm_k"],
        "A_ssm_D": _A_in["ssm_D"],
        "B_x": _B_in["x"],
        "B_w1": _B_in["w1"],
        "B_b1": _B_in["b1"],
        "B_w2": _B_in["w2"],
    }

def reference(A_q, A_k, A_v, A_shift_k, A_ssm_k, A_ssm_D, B_x, B_w1, B_b1, B_w2):
    def _A_ref(q, k, v, shift_k, ssm_k, ssm_D):
        B, S, D = q.shape
        ks = shift_k.shape[-1]
        k_pad = _pad(k, ((0, 0), (ks - 1, 0), (0, 0)))
        k_shift = torch.zeros_like(k)
        for t in range(ks):
            k_shift = k_shift + k_pad[:, t:t + S, :] * shift_k[:, ks - 1 - t][None, None, :]
        kv = k_shift * v
        L = 2 * S
        kv_pad = _pad(kv, ((0, 0), (0, S), (0, 0)))
        kf_pad = _pad(ssm_k, ((0, 0), (0, S)))
        kv_f = (lambda x, axes=(-2,-1): torch.fft.rfft2(x.float(), dim=axes))(kv_pad[:, None, :, :], axes=(1, 2))
        kf_f = (lambda x, axes=(-2,-1): torch.fft.rfft2(x.float(), dim=axes))(kf_pad[:, None, :], axes=(1, 2))
        kf_f = (lambda x, *d: x.permute(*d))(kf_f, 1, 2, 0)
        y_f = kv_f * kf_f[None, :, :, :]
        y = (lambda x, s, axes=(-2,-1): torch.fft.irfft2(x, s=s, dim=axes).to(torch.bfloat16))(y_f, (1, L), axes=(1, 2))[:, 0, :S, :]
        y = y + kv * ssm_D[None, None, :]
        return q * y

    def _B_ref(x, w1, b1, w2):
        h = torch.einsum("bsd,df->bsf", x, w1) + b1
        sp = torch.log1p(torch.exp(-torch.abs(h))) + torch.where(h > 0, h, torch.zeros_like(h))
        act = h * torch.tanh(sp)
        return torch.einsum("bsf,fd->bsd", act, w2)

    x = A_q
    x = x + _A_ref(_layernorm(x, axis=-1), A_k, A_v, A_shift_k, A_ssm_k, A_ssm_D)
    x = x + _B_ref(_layernorm(x, axis=-1), B_w1, B_b1, B_w2)
    x = x + _A_ref(_layernorm(x, axis=-1), A_k, A_v, A_shift_k, A_ssm_k, A_ssm_D)
    x = x + _B_ref(_layernorm(x, axis=-1), B_w1, B_b1, B_w2)
    return x
```

```python
S, D, F = 2048, 512, 1792

KA_Q, KA_K, KA_V, KA_SK, KA_H, KA_D, KA_BX, KA_W1, KA_B1, KA_W2, KA_OUT, KA_DBG, KA_WS = [8 * i for i in range(13)]

WS_KVT = 0x0000000
WS_YT = 0x0200000
WS_W1F = 0x0400000
WS_W2F = 0x0600000
WS_H = 0x0800000
WS_X1 = 0x1000000
WS_X2 = 0x1200000
WS_X3 = 0x1400000
WS_SYNC = 0x1600000

SRD3 = 0x00020000


class Asm:
    def __init__(self):
        self.lines = []
        self.uid = 0

    def __call__(self, text):
        for ln in text.strip("\n").split("\n"):
            ln = ln.strip()
            if ln:
                self.lines.append(ln if ln.endswith(":") else "  " + ln)

    def label(self, base):
        self.uid += 1
        return f"{base}_{self.uid}"

    def text(self):
        return "\n".join(self.lines) + "\n"


def vr(base, n=1):
    return f"v{base}" if n == 1 else f"v[{base}:{base + n - 1}]"


def ar(base, n=1):
    return f"a{base}" if n == 1 else f"a[{base}:{base + n - 1}]"


def sr(base, n=1):
    return f"s{base}" if n == 1 else f"s[{base}:{base + n - 1}]"


def srd_from_ptr(a, srd, ptr, nbytes, add=0):
    if add:
        a(f"s_add_u32 s{srd}, s{ptr}, {hex(add)}")
        a(f"s_addc_u32 s{srd + 1}, s{ptr + 1}, 0")
    else:
        a(f"s_mov_b32 s{srd}, s{ptr}")
        a(f"s_mov_b32 s{srd + 1}, s{ptr + 1}")
    a(f"s_mov_b32 s{srd + 2}, {hex(nbytes)}")
    a(f"s_mov_b32 s{srd + 3}, {hex(SRD3)}")


def srd_from_ptr_sadd(a, srd, ptr, nbytes, sadd, add=0):
    a(f"s_add_u32 s{srd}, s{ptr}, s{sadd}")
    a(f"s_addc_u32 s{srd + 1}, s{ptr + 1}, 0")
    if add:
        a(f"s_add_u32 s{srd}, s{srd}, {hex(add)}")
        a(f"s_addc_u32 s{srd + 1}, s{srd + 1}, 0")
    a(f"s_mov_b32 s{srd + 2}, {hex(nbytes)}")
    a(f"s_mov_b32 s{srd + 3}, {hex(SRD3)}")


def kernel_header(name):
    return (f".globl {name}\n.p2align 8\n.type {name},@function\n{name}:\n")


def kernel_desc(name, nvgpr, accum, nsgpr=96):
    return f""".amdhsa_kernel {name}
  .amdhsa_next_free_vgpr {nvgpr}
  .amdhsa_next_free_sgpr {nsgpr}
  .amdhsa_accum_offset {accum}
  .amdhsa_group_segment_fixed_size 0
  .amdhsa_kernarg_size 104
  .amdhsa_user_sgpr_count 2
  .amdhsa_user_sgpr_kernarg_segment_ptr 1
  .amdhsa_system_sgpr_workgroup_id_x 1
.end_amdhsa_kernel
"""
```

```python
from common import *


def emit_p0(a, wg=2):
    sK, sV, sSK, sW1, sW2, sWS = 4, 6, 8, 10, 12, 14
    a(f"""
    s_load_dwordx2 s[{sK}:{sK+1}], s[0:1], {KA_K}
    s_load_dwordx2 s[{sV}:{sV+1}], s[0:1], {KA_V}
    s_load_dwordx2 s[{sSK}:{sSK+1}], s[0:1], {KA_SK}
    s_load_dwordx2 s[{sW1}:{sW1+1}], s[0:1], {KA_W1}
    s_load_dwordx2 s[{sW2}:{sW2+1}], s[0:1], {KA_W2}
    s_load_dwordx2 s[{sWS}:{sWS+1}], s[0:1], {KA_WS}
    v_lshrrev_b32 v1, 6, v0
    v_and_b32 v2, 7, v0
    v_lshrrev_b32 v3, 3, v0
    v_readfirstlane_b32 s16, v1
    s_lshr_b32 s17, s{wg}, 3
    s_and_b32 s18, s{wg}, 7
    s_waitcnt lgkmcnt(0)
    """)
    rK, rV, rS, rWsrc, rKVT, rWdst = 20, 24, 28, 32, 36, 40
    srd_from_ptr(a, rK, sK, S * D * 2)
    srd_from_ptr(a, rV, sV, S * D * 2)
    srd_from_ptr(a, rS, sSK, D * 4 * 2)
    srd_from_ptr(a, rKVT, sWS, D * S * 2, WS_KVT)
    KR, VR, SR = 16, 36, 44
    a(f"""
    s_lshl_b32 s19, s17, 16
    s_lshl_b32 s44, s18, 7
    s_add_u32 s19, s19, s44
    v_lshlrev_b32 v4, 11, v3
    v_lshl_add_u32 v4, v2, 4, v4
    v_add_u32 v4, s19, v4
    v_subrev_u32 v5, 3072, v4
    v_subrev_u32 v6, 2048, v4
    v_subrev_u32 v7, 1024, v4
    buffer_load_dwordx4 v[{KR}:{KR+3}], v5, s[{rK}:{rK+3}], 0 offen
    buffer_load_dwordx4 v[{KR+4}:{KR+7}], v6, s[{rK}:{rK+3}], 0 offen
    buffer_load_dwordx4 v[{KR+8}:{KR+11}], v7, s[{rK}:{rK+3}], 0 offen
    buffer_load_dwordx4 v[{KR+12}:{KR+15}], v4, s[{rK}:{rK+3}], 0 offen
    buffer_load_dwordx4 v[{KR+16}:{KR+19}], v4, s[{rK}:{rK+3}], 0 offen offset:1024
    buffer_load_dwordx4 v[{VR}:{VR+3}], v4, s[{rV}:{rV+3}], 0 offen
    buffer_load_dwordx4 v[{VR+4}:{VR+7}], v4, s[{rV}:{rV+3}], 0 offen offset:1024
    s_lshl_b32 s44, s18, 9
    v_lshlrev_b32 v8, 6, v2
    v_add_u32 v8, s44, v8
    """)
    for i in range(4):
        a(f"buffer_load_dwordx4 v[{SR+4*i}:{SR+4*i+3}], v8, s[{rS}:{rS+3}], 0 offen offset:{16*i}")
    WR = 60
    WP = 76
    lab_w2 = a.label("P0_W2"); lab_wl = a.label("P0_WL"); lab_now = a.label("P0_NOW"); lab_now2 = a.label("P0_NOW")
    a(f"""
    s_lshl_b32 s45, s{wg}, 2
    s_add_u32 s45, s45, s16
    v_and_b32 v9, 15, v0
    v_bfe_u32 v10, v0, 4, 2
    v_lshlrev_b32 v9, 3, v9
    s_cmp_ge_u32 s45, 896
    s_cbranch_scc1 {lab_now}
    s_cmp_ge_u32 s45, 448
    s_cbranch_scc1 {lab_w2}
    """)
    srd_from_ptr(a, rWsrc, sW1, D * F * 2)
    srd_from_ptr(a, rWdst, sWS, D * F * 2, WS_W1F)
    a(f"""
    s_lshr_b32 s46, s45, 4
    s_and_b32 s47, s45, 15
    s_mul_i32 s47, s47, {32 * 3584}
    s_lshl_b32 s46, s46, 7
    s_add_u32 s47, s47, s46
    s_mov_b32 s48, 3584
    s_lshl_b32 s49, s45, 12
    v_mul_u32_u24 v10, {8 * 3584}, v10
    s_branch {lab_wl}
    {lab_w2}:
    """)
    srd_from_ptr(a, rWsrc, sW2, D * F * 2)
    srd_from_ptr(a, rWdst, sWS, D * F * 2, WS_W2F)
    a(f"""
    s_sub_u32 s45, s45, 448
    s_mul_i32 s46, s45, 1171
    s_lshr_b32 s46, s46, 16
    s_mul_i32 s47, s46, 56
    s_sub_u32 s47, s45, s47
    s_lshr_b32 s50, s47, 1
    s_and_b32 s47, s47, 1
    s_lshl_b32 s50, s50, 16
    s_lshl_b32 s47, s47, 13
    s_add_u32 s47, s47, s50
    s_lshl_b32 s46, s46, 7
    s_add_u32 s47, s47, s46
    s_mov_b32 s48, 1024
    s_lshl_b32 s49, s45, 12
    v_lshlrev_b32 v10, 14, v10
    {lab_wl}:
    v_add_u32 v10, v9, v10
    """)
    for e in range(8):
        a(f"buffer_load_dwordx2 v[{WR+2*e}:{WR+2*e+1}], v10, s[{rWsrc}:{rWsrc+3}], s47 offen")
        if e < 7:
            a("s_add_u32 s47, s47, s48")
    a(f"{lab_now}:")
    KF, WF, VF, AC = 96, 136, 168, 184
    a("s_mov_b32 s51, 0xffff0000")
    a(f"s_cmp_ge_u32 s45, 896\ns_cbranch_scc1 {lab_now2}")
    a("s_waitcnt vmcnt(8)")
    lab_j = a.label("P0_J")
    a(f"s_branch {lab_j}\n{lab_now2}:\ns_waitcnt vmcnt(0)\n{lab_j}:")
    for i in range(5):
        for p in range(4):
            a(f"v_lshlrev_b32 v{KF+8*i+2*p}, 16, v{KR+4*i+p}")
            a(f"v_and_b32 v{KF+8*i+2*p+1}, s51, v{KR+4*i+p}")
    for c in range(8):
        for j in range(4):
            src = SR + 2 * c + (j >> 1)
            if j & 1:
                a(f"v_and_b32 v{WF+8*j+c}, s51, v{src}")
            else:
                a(f"v_lshlrev_b32 v{WF+8*j+c}, 16, v{src}")
    for t in range(2):
        for p in range(4):
            a(f"v_lshlrev_b32 v{VF+8*t+2*p}, 16, v{VR+4*t+p}")
            a(f"v_and_b32 v{VF+8*t+2*p+1}, s51, v{VR+4*t+p}")
    for t in range(2):
        for j in range(4):
            for p in range(4):
                i = 3 + t - j
                d = AC + 8 * t + 2 * p
                k = KF + 8 * i + 2 * p
                w = WF + 8 * j + 2 * p
                if j == 0:
                    a(f"v_pk_mul_f32 v[{d}:{d+1}], v[{k}:{k+1}], v[{w}:{w+1}]")
                else:
                    a(f"v_pk_fma_f32 v[{d}:{d+1}], v[{k}:{k+1}], v[{w}:{w+1}], v[{d}:{d+1}]")
    for t in range(2):
        for p in range(4):
            d = AC + 8 * t + 2 * p
            v = VF + 8 * t + 2 * p
            a(f"v_pk_mul_f32 v[{d}:{d+1}], v[{d}:{d+1}], v[{v}:{v+1}]")
    PK = 16
    for c in range(8):
        a(f"v_cvt_pk_bf16_f32 v{PK+c}, v{AC+8+c}, v{AC+c}")
    a(f"""
    v_lshrrev_b32 v5, 2, v3
    v_xor_b32 v5, v5, v2
    v_lshlrev_b32 v5, 4, v5
    v_lshl_add_u32 v5, v2, 10, v5
    v_and_b32 v6, 3, v3
    v_sub_u32 v6, 3, v6
    v_lshl_add_u32 v5, v6, 2, v5
    """)
    for c in range(8):
        a(f"ds_write_b32 v5, v{PK+c} offset:{128*c}")
    lab_nw3 = a.label("P0_NW")
    a(f"""
    s_cmp_ge_u32 s45, 896
    s_cbranch_scc1 {lab_nw3}
    s_mov_b32 s52, 0x05040100
    s_mov_b32 s53, 0x07060302
    s_waitcnt vmcnt(0)
    """)
    for c in range(4):
        for j in range(4):
            lo = WR + 2 * (2 * j) + (c >> 1)
            hi = WR + 2 * (2 * j + 1) + (c >> 1)
            a(f"v_perm_b32 v{WP+4*c+j}, v{hi}, v{lo}, s{52 + (c & 1)}")
    a("v_and_b32 v11, 63, v0\nv_lshlrev_b32 v11, 4, v11")
    for c in range(4):
        a(f"buffer_store_dwordx4 v[{WP+4*c}:{WP+4*c+3}], v11, s[{rWdst}:{rWdst+3}], s49 offen offset:{1024*c}")
    a(f"{lab_nw3}:")
    a(f"""
    s_waitcnt lgkmcnt(0)
    s_barrier
    v_and_b32 v5, 7, v0
    v_lshrrev_b32 v6, 3, v0
    v_xor_b32 v7, s16, v5
    v_lshlrev_b32 v7, 4, v7
    v_lshl_add_u32 v7, v6, 7, v7
    v_xor_b32 v8, 64, v7
    ds_read_b128 v[16:19], v7
    ds_read_b128 v[20:23], v8 offset:4096
    s_lshl_b32 s44, s18, 18
    s_lshl_b32 s46, s17, 7
    s_add_u32 s44, s44, s46
    v_lshlrev_b32 v9, 12, v6
    v_lshl_add_u32 v9, v5, 4, v9
    v_add_u32 v9, s44, v9
    v_add_u32 v10, 0x20000, v9
    s_waitcnt lgkmcnt(1)
    buffer_store_dwordx4 v[16:19], v9, s[{rKVT}:{rKVT+3}], 0 offen
    s_waitcnt lgkmcnt(0)
    buffer_store_dwordx4 v[20:23], v10, s[{rKVT}:{rKVT+3}], 0 offen
    """)
    return dict(vgpr=200, accum=200, lds=8192)
```

```python
from common import *

OFF = (0, 1, 4, 5, 8, 8, 11, 12)
CH_STRIDE = 34816
UBASE = 69632
USTRIDE = 4608
RED = UBASE + 2 * USTRIDE
LDS = RED + 16384


def emit_p1(a, wg=2):
    sH, sD, sWS = 4, 6, 8
    rH0, rH1, rKV, rY = 20, 24, 28, 32
    a(f"""
    s_load_dwordx2 s[{sH}:{sH+1}], s[0:1], {KA_H}
    s_load_dwordx2 s[{sD}:{sD+1}], s[0:1], {KA_D}
    s_load_dwordx2 s[{sWS}:{sWS+1}], s[0:1], {KA_WS}
    v_lshrrev_b32 v1, 6, v0
    v_and_b32 v2, 63, v0
    v_lshlrev_b32 v3, 4, v0
    v_readfirstlane_b32 s16, v1
    s_lshl_b32 s17, s{wg}, 13
    s_lshl_b32 s12, s{wg}, 2
    s_waitcnt lgkmcnt(0)
    s_load_dword s13, s[{sD}:{sD+1}], s12
    """)
    srd_from_ptr_sadd(a, rH0, sH, 4096, 17)
    srd_from_ptr_sadd(a, rH1, sH, 4096, 17, 4096)
    srd_from_ptr_sadd(a, rKV, sWS, 8192, 17, WS_KVT)
    srd_from_ptr_sadd(a, rY, sWS, 8192, 17, WS_YT)
    W = [16, 40]
    a(f"""
    v_subrev_u32 v4, 16, v3
    buffer_load_dwordx4 v[{W[0]}:{W[0]+3}], v4, s[{rH0}:{rH0+3}], 0 offen
    buffer_load_dwordx4 v[{W[0]+4}:{W[0]+7}], v3, s[{rH0}:{rH0+3}], 0 offen
    buffer_load_dwordx4 v[{W[1]}:{W[1]+3}], v4, s[{rH1}:{rH1+3}], 0 offen
    buffer_load_dwordx4 v[{W[1]+4}:{W[1]+7}], v3, s[{rH1}:{rH1+3}], 0 offen
    s_lshr_b32 s18, s16, 1
    s_and_b32 s19, s16, 1
    s_mul_i32 s14, s18, {USTRIDE}
    s_lshl_b32 s15, s19, 11
    s_add_u32 s14, s14, s15
    s_add_u32 s14, s14, {UBASE + 512}
    s_mov_b32 m0, s14
    s_lshl_b32 s15, s16, 11
    v_lshlrev_b32 v5, 4, v2
    buffer_load_dwordx4 v5, s[{rKV}:{rKV+3}], s15 offen lds
    s_add_u32 s14, s14, 1024
    s_mov_b32 m0, s14
    s_add_u32 s15, s15, 1024
    buffer_load_dwordx4 v5, s[{rKV}:{rKV+3}], s15 offen lds
    """)
    lz1 = a.label("P1_Z1"); lz2 = a.label("P1_Z2")
    a(f"""
    v_mov_b32 v8, 0
    v_mov_b32 v9, 0
    v_mov_b32 v10, 0
    v_mov_b32 v11, 0
    s_cmp_eq_u32 s16, 0
    s_cbranch_scc0 {lz1}
    v_lshrrev_b32 v6, 5, v2
    v_mul_u32_u24 v6, {USTRIDE}, v6
    v_and_b32 v7, 31, v2
    v_lshl_add_u32 v6, v7, 4, v6
    v_add_u32 v6, {UBASE}, v6
    ds_write_b128 v6, v[8:11]
    {lz1}:
    s_cmp_eq_u32 s16, 1
    s_cbranch_scc0 {lz2}
    v_and_b32 v6, 7, v2
    v_lshlrev_b32 v7, 2, v6
    s_mov_b32 s14, 0xCB885411
    v_lshrrev_b32 v7, v7, s14
    v_and_b32 v7, 15, v7
    v_mul_u32_u24 v6, 272, v6
    v_add_u32 v6, v6, v7
    v_lshlrev_b32 v6, 4, v6
    v_bfe_u32 v7, v2, 3, 1
    v_mul_u32_u24 v7, {CH_STRIDE}, v7
    v_add_u32 v6, v6, v7
    ds_write_b128 v6, v[8:11]
    {lz2}:
    """)
    VA, VB = 12, 13
    a(f"""
    v_and_b32 v4, 15, v2
    v_lshrrev_b32 v5, 4, v2
    v_add_u32 v6, 1, v4
    v_and_b32 v7, 7, v6
    v_lshrrev_b32 v6, 3, v6
    v_lshlrev_b32 v14, 2, v7
    s_mov_b32 s14, 0xCB885410
    v_lshrrev_b32 v14, v14, s14
    v_and_b32 v14, 15, v14
    v_mul_u32_u24 v7, 272, v7
    v_add_u32 v7, v7, v14
    v_add_u32 v7, v7, v6
    v_sub_u32 v7, v7, v5
    v_add_u32 v7, 3, v7
    v_lshlrev_b32 v{VA}, 4, v7
    s_mul_i32 s14, s18, {CH_STRIDE}
    s_lshl_b32 s15, s19, 8
    s_add_u32 s14, s14, s15
    v_add_u32 v{VA}, s14, v{VA}
    v_lshlrev_b32 v{VB}, 5, v4
    v_lshl_add_u32 v{VB}, v5, 4, v{VB}
    s_mul_i32 s14, s18, {USTRIDE}
    s_sub_u32 s14, s14, s15
    s_add_u32 s14, s14, {UBASE + 480 - 192}
    v_add_u32 v{VB}, s14, v{VB}
    """)
    AD = 192
    a(f"""
    s_waitcnt lgkmcnt(0)
    s_lshl_b32 s14, s18, 4
    s_lshr_b32 s13, s13, s14
    s_and_b32 s13, s13, 0xffff
    v_lshrrev_b32 v6, 3, v4
    v_add_u32 v6, 2, v6
    v_and_b32 v7, 7, v4
    v_sub_u32 v7, 7, v7
    v_and_b32 v14, 1, v7
    v_lshlrev_b32 v14, 4, v14
    v_lshlrev_b32 v14, v14, s13
    v_lshrrev_b32 v7, 1, v7
    v_cmp_eq_u32 vcc, v6, v5
    s_nop 1
    v_cndmask_b32 v14, 0, v14, vcc
    """)
    for r in range(4):
        a(f"v_cmp_eq_u32 vcc, {r}, v7\ns_nop 1\nv_cndmask_b32 v{AD+r}, 0, v14, vcc")
    for ch in range(2):
        w = W[ch]
        Wp, Z, Zp = w + 8, w + 14 + 0, 0
        Wp = 64 + 20 * ch
        Z = Wp + 6
        Zp = Z + 6
        a(f"s_waitcnt vmcnt({4 - 2 * ch})")
        for i in range(6):
            a(f"v_mov_b32 v{Wp+i}, v{w+1+i}")
        for i in range(6):
            a(f"v_alignbit_b32 v{Z+i}, v{w+i+1}, v{w+i}, 16")
        for i in range(6):
            a(f"v_alignbit_b32 v{Zp+i}, v{w+i+2}, v{w+i+1}, 16")
        src = {0: w + 4, 1: Z, 2: Wp, 3: Zp, 4: w + 2, 5: Z + 2, 6: Wp + 2, 7: Zp + 2}
        for c in range(8):
            off = ch * CH_STRIDE + 16 * (272 * c + OFF[c] + (2 if c == 0 else 1))
            a(f"ds_write_b128 v3, v[{src[c]}:{src[c]+3}] offset:{off}")
    ACC = 16
    FA = [112, 48]
    FB = [144, 80]
    a("s_waitcnt vmcnt(0) lgkmcnt(0)\ns_barrier")

    def reads(i):
        p = i & 1
        out = [f"ds_read_b128 v[{FA[p]}:{FA[p]+3}], v{VA} offset:{64*i}"]
        for b in range(8):
            out.append(f"ds_read_b128 v[{FB[p]+4*b}:{FB[p]+4*b+3}], v{VB} offset:{512*b + 192 - 64*i}")
        for aa in range(1, 8):
            out.append(f"ds_read_b128 v[{FA[p]+4*aa}:{FA[p]+4*aa+3}], v{VA} offset:{64*i + 512*aa}")
        return out

    r0 = reads(0)
    for x in r0[:15]:
        a(x)
    for r in range(32):
        a(f"v_mov_b32 v{ACC+r}, 0")
    a(r0[15])
    for i in range(4):
        p = i & 1
        nxt = reads(i + 1) if i < 3 else []
        a("s_waitcnt lgkmcnt(7)" if i == 0 else "s_waitcnt lgkmcnt(0)")
        cnt = 0
        for aa in range(8):
            if i == 0 and aa >= 1:
                a(f"s_waitcnt lgkmcnt({min(15, 7 - aa + len([1 for k in range(0, cnt, 2) if k < 32]))})")
            for b in range(8 - aa):
                ct = aa + b
                a(f"v_mfma_f32_16x16x32_bf16 v[{ACC+4*ct}:{ACC+4*ct+3}], v[{FA[p]+4*aa}:{FA[p]+4*aa+3}], "
                  f"v[{FB[p]+4*b}:{FB[p]+4*b+3}], v[{ACC+4*ct}:{ACC+4*ct+3}]")
                if cnt % 2 == 0 and cnt // 2 < len(nxt):
                    a(nxt[cnt // 2])
                cnt += 1
        if i == 0:
            lnd = a.label("P1_ND")
            a(f"s_cmp_eq_u32 s19, 0\ns_cbranch_scc0 {lnd}")
            for ct in range(8):
                a(f"v_mfma_f32_16x16x32_bf16 v[{ACC+4*ct}:{ACC+4*ct+3}], v[{AD}:{AD+3}], "
                  f"v[{FB[0]+4*ct}:{FB[0]+4*ct+3}], v[{ACC+4*ct}:{ACC+4*ct+3}]")
            a(f"{lnd}:")
    lh1 = a.label("P1_H1"); lj = a.label("P1_J")
    a(f"""
    v_lshlrev_b32 v4, 4, v2
    s_lshl_b32 s14, s16, 12
    s_add_u32 s14, s14, {RED}
    v_add_u32 v5, s14, v4
    s_xor_b32 s15, s16, 1
    s_lshl_b32 s15, s15, 12
    s_add_u32 s15, s15, {RED}
    v_add_u32 v6, s15, v4
    s_nop 7
    s_cmp_eq_u32 s19, 0
    s_cbranch_scc0 {lh1}
    """)
    for q in range(4):
        a(f"ds_write_b128 v5, v[{ACC+16+4*q}:{ACC+16+4*q+3}] offset:{1024*q}")
    a(f"s_branch {lj}\n{lh1}:")
    for q in range(4):
        a(f"ds_write_b128 v5, v[{ACC+4*q}:{ACC+4*q+3}] offset:{1024*q}")
    for r in range(16):
        a(f"v_mov_b32 v{ACC+r}, v{ACC+16+r}")
    a(f"{lj}:")
    a(f"""
    v_and_b32 v7, 15, v2
    v_lshrrev_b32 v8, 4, v2
    v_lshlrev_b32 v7, 5, v7
    v_lshl_add_u32 v7, v8, 3, v7
    s_lshl_b32 s14, s18, 12
    s_lshl_b32 s15, s19, 11
    s_add_u32 s14, s14, s15
    s_waitcnt lgkmcnt(0)
    s_barrier
    """)
    RD = 64
    for q in range(4):
        a(f"ds_read_b128 v[{RD+4*q}:{RD+4*q+3}], v6 offset:{1024*q}")
    for q in range(4):
        a(f"s_waitcnt lgkmcnt({3-q})")
        for r in range(4):
            a(f"v_add_f32 v{ACC+4*q+r}, v{ACC+4*q+r}, v{RD+4*q+r}")
        a(f"v_cvt_pk_bf16_f32 v{RD+16+2*q}, v{ACC+4*q}, v{ACC+4*q+1}")
        a(f"v_cvt_pk_bf16_f32 v{RD+16+2*q+1}, v{ACC+4*q+2}, v{ACC+4*q+3}")
        a(f"buffer_store_dwordx2 v[{RD+16+2*q}:{RD+16+2*q+1}], v7, s[{rY}:{rY+3}], s14 offen offset:{512*q}")
    return dict(vgpr=200, accum=200, lds=LDS)
```

```python
from common import *

N1 = 65536
LDS = 131072


def merge(a, main, side, start, per):
    k = 0
    for i, m in enumerate(main):
        for x in (m if isinstance(m, list) else [m]):
            a(x)
        if i >= start:
            for _ in range(per):
                if k < len(side):
                    a(side[k]); k += 1
    while k < len(side):
        a(side[k]); k += 1


def emit_p2(a, second, wg=2):
    sX, sB1, sWS = 4, 6, 8
    rX, rY, rW, rB, rXO, rH = 20, 24, 28, 32, 36, 40
    a(f"""
    s_load_dwordx2 s[{sWS}:{sWS+1}], s[0:1], {KA_WS}
    s_load_dwordx2 s[{sB1}:{sB1+1}], s[0:1], {KA_B1}
    s_load_dwordx2 s[{sX}:{sX+1}], s[0:1], {KA_Q}
    v_lshrrev_b32 v1, 6, v0
    v_and_b32 v2, 63, v0
    s_and_b32 s17, s{wg}, 7
    v_readfirstlane_b32 s16, v1
    s_lshr_b32 s18, s{wg}, 3
    s_mul_i32 s19, s18, 9363
    s_lshr_b32 s19, s19, 16
    s_mul_i32 s12, s19, 7
    s_sub_u32 s18, s18, s12
    s_lshl_b32 s17, s17, 2
    s_add_u32 s17, s17, s19
    s_lshl_b32 s19, s18, 2
    s_add_u32 s19, s19, s16
    s_waitcnt lgkmcnt(0)
    """)
    if second:
        srd_from_ptr(a, rX, sWS, S * D * 2, WS_X2)
    else:
        srd_from_ptr(a, rX, sX, S * D * 2)
    srd_from_ptr(a, rY, sWS, S * D * 2, WS_YT)
    srd_from_ptr(a, rW, sWS, D * F * 2, WS_W1F)
    srd_from_ptr(a, rB, sB1, F * 2)
    srd_from_ptr(a, rXO, sWS, S * D * 2, WS_X3 if second else WS_X1)
    srd_from_ptr(a, rH, sWS, 128 * 57344, WS_H)
    XR, XB, T = 16, 144, 208
    VYE, VYO, VX, VL16, VT0 = 3, 4, 5, 6, 7
    a(f"""
    v_lshrrev_b32 v8, 3, v2
    v_lshlrev_b32 v8, 12, v8
    v_and_b32 v9, 7, v2
    v_bfe_u32 v10, v2, 4, 1
    v_lshlrev_b32 v10, 1, v10
    v_xor_b32 v9, v9, v10
    v_lshl_add_u32 v{VYE}, v9, 4, v8
    v_xor_b32 v{VYO}, 64, v{VYE}
    s_lshl_b32 s12, s16, 19
    s_lshl_b32 s13, s17, 7
    s_add_u32 s12, s12, s13
    s_lshl_b32 s13, s16, 14
    s_mov_b32 m0, s13
    v_and_b32 v8, 15, v2
    v_lshrrev_b32 v9, 4, v2
    """)
    for i in range(16):
        a(f"buffer_load_dwordx4 v{VYE if i % 2 == 0 else VYO}, s[{rY}:{rY+3}], s12 offen lds")
        if i < 15:
            a("s_add_u32 m0, m0, 1024\ns_add_u32 s12, s12, 0x8000")
    a(f"""
    s_lshl_b32 s12, s16, 4
    v_add_u32 v10, s12, v8
    v_lshlrev_b32 v10, 10, v10
    v_lshl_add_u32 v{VX}, v9, 4, v10
    s_lshl_b32 s14, s17, 16
    v_lshlrev_b32 v{VL16}, 4, v2
    """)
    for ks in range(16):
        a(f"buffer_load_dwordx4 v[{XR+8*ks}:{XR+8*ks+3}], v{VX}, s[{rX}:{rX+3}], s14 offen offset:{64*ks}")
    BR = 8
    a(f"""
    s_lshl_b32 s12, s19, 7
    v_lshlrev_b32 v11, 5, v9
    v_add_u32 v11, s12, v11
    s_lshl_b32 s15, s19, 16
    buffer_load_dwordx4 v[{T}:{T+3}], v11, s[{rB}:{rB+3}], 0 offen
    buffer_load_dwordx4 v[{T+4}:{T+7}], v11, s[{rB}:{rB+3}], 0 offen offset:16
    """)
    wl = []
    for ks in range(16):
        for c in range(4):
            x = f"buffer_load_dwordx4 a[{16*ks+4*c}:{16*ks+4*c+3}], v{VL16}, s[{rW}:{rW+3}], s15 offen offset:{1024*c}"
            if c == 3 and ks < 15:
                x += "\ns_add_u32 s15, s15, 4096"
            wl.append(x)
    for x in wl[:29]:
        a(x)
    MK, ONE, D3, RS = 240, 244, 248, 252
    S1, S2 = 232, 236
    a(f"""
    v_lshlrev_b32 v10, 2, v9
    v_sub_u32 v10, v8, v10
    """)
    for r in range(4):
        a(f"v_cmp_eq_u32 vcc, {r}, v10\nv_mov_b32 v{ONE+r}, 0x3f803f80\nv_mov_b32 v{D3+r}, 0\nv_cndmask_b32 v{MK+r}, 0, 1.0, vcc")
    a(f"""
    v_lshrrev_b32 v10, 2, v8
    v_and_b32 v11, 3, v2
    v_lshl_add_u32 v12, v9, 3, v10
    v_lshlrev_b32 v12, 7, v12
    v_lshrrev_b32 v13, 1, v11
    s_lshl_b32 s12, s16, 1
    v_add_u32 v13, s12, v13
    v_and_b32 v10, 2, v10
    v_xor_b32 v13, v13, v10
    v_and_b32 v10, 1, v9
    v_lshlrev_b32 v10, 2, v10
    v_xor_b32 v13, v13, v10
    v_lshl_add_u32 v12, v13, 4, v12
    v_and_b32 v11, 1, v11
    v_lshl_add_u32 v{VT0}, v11, 3, v12
    v_mov_b32 v14, 1.0
    """)
    for r in range(4):
        a(f"v_mov_b32 v{S1+r}, 0\nv_mov_b32 v{S2+r}, 0")

    def stats_mfma(reg):
        return [f"v_mfma_f32_16x16x32_bf16 v[{S1}:{S1+3}], v[{ONE}:{ONE+3}], v[{reg}:{reg+3}], v[{S1}:{S1+3}]",
                f"v_mfma_f32_16x16x32_bf16 v[{S2}:{S2+3}], v[{reg}:{reg+3}], v[{reg}:{reg+3}], v[{S2}:{S2+3}]"]

    def stats_final():
        a(f"""
        s_nop 7
        v_mul_f32 v10, v{S2}, v{MK}
        v_fma_f32 v10, v{S2+1}, v{MK+1}, v10
        v_fma_f32 v10, v{S2+2}, v{MK+2}, v10
        v_fma_f32 v10, v{S2+3}, v{MK+3}, v10
        v_mul_f32 v11, {1.0/512!r}, v{S1}
        s_nop 0
        v_mfma_f32_16x16x4_f32 v[{D3}:{D3+3}], v14, v10, 0
        v_mul_f32 v12, v11, v11
        s_nop 7
        s_nop 7
        v_mul_f32 v13, {1.0/512!r}, v{D3}
        v_sub_f32 v13, v13, v12
        v_max_f32 v13, 0, v13
        v_add_f32 v13, {hex(0x3727c5ac)}, v13
        v_rsq_f32 v{RS}, v13
        s_nop 0
        v_mov_b32 v{RS+1}, v{RS}
        v_mul_f32 v{RS+2}, v11, v{RS}
        v_mul_f32 v{RS+2}, -1.0, v{RS+2}
        v_mov_b32 v{RS+3}, v{RS+2}
        """)

    a("s_waitcnt vmcnt(31)")
    main = []
    for ks in range(16):
        main += stats_mfma(XR + 8 * ks)
    merge(a, main, wl[29:61], 0, 1)
    a("s_barrier")

    def yread(ks):
        return [f"ds_read_b64_tr_b16 v[{XR+8*ks+4+2*hh}:{XR+8*ks+5+2*hh}], v{VT0} offset:{(32*ks+4*hh)*128}" for hh in range(2)]
    for ks in range(7):
        for x in yread(ks):
            a(x)
    for x in wl[61:]:
        a(x)
    stats_final()
    for r in range(4):
        a(f"v_mov_b32 v{S1+r}, 0\nv_mov_b32 v{S2+r}, 0")
    a("v_mov_b32 v8, 0xffff0000")
    XF, YF, TA = T + 8, T + 16, 12
    pend = []
    for ks in range(16):
        R = XR + 8 * ks
        nread = min(15, ks + 7) - ks
        outstanding = 2 * (min(16, ks + 7) - ks - 1)
        a(f"s_waitcnt lgkmcnt({outstanding})")
        for p in range(4):
            a(f"v_lshlrev_b32 v{XF+2*p}, 16, v{R+p}")
            a(f"v_and_b32 v{XF+2*p+1}, v8, v{R+p}")
        for x in pend:
            a(x)
        pend = []
        for p in range(4):
            a(f"v_lshlrev_b32 v{YF+2*p}, 16, v{R+4+p}")
            a(f"v_and_b32 v{YF+2*p+1}, v8, v{R+4+p}")
        for p in range(4):
            a(f"v_pk_fma_f32 v[{R+2*p}:{R+2*p+1}], v[{XF+2*p}:{XF+2*p+1}], v[{RS}:{RS+1}], v[{RS+2}:{RS+3}]")
        for p in range(4):
            a(f"v_pk_fma_f32 v[{R+2*p}:{R+2*p+1}], v[{R+2*p}:{R+2*p+1}], v[{YF+2*p}:{YF+2*p+1}], v[{XF+2*p}:{XF+2*p+1}]")
        if ks + 7 < 16:
            for x in yread(ks + 7):
                a(x)
        for p in range(4):
            a(f"v_cvt_pk_bf16_f32 v{XB+4*ks+p}, v{R+2*p}, v{R+2*p+1}")
        pend = stats_mfma(XB + 4 * ks)
    a("s_nop 1")
    for x in pend:
        a(x)
    for m in range(7):
        lab = a.label("P2_XS")
        a(f"s_cmp_eq_u32 s18, {m}\ns_cbranch_scc0 {lab}")
        for ks in range(m, 16, 7):
            a(f"buffer_store_dwordx4 v[{XB+4*ks}:{XB+4*ks+3}], v{VX}, s[{rXO}:{rXO+3}], s14 offen offset:{64*ks}")
        a(f"{lab}:")
    stats_final()
    a(f"""
    s_lshl_b32 s12, s16, 14
    s_add_u32 s12, s12, {N1}
    v_add_u32 v9, s12, v{VL16}
    v_add_u32 v10, {N1}, v{VL16}
    """)
    NP = [T + 8, T + 12, T + 16, T + 20]
    for ks in range(16):
        R = XR + 8 * ks
        o = NP[ks % 4]
        for p in range(4):
            a(f"v_pk_fma_f32 v[{R+2*p}:{R+2*p+1}], v[{R+2*p}:{R+2*p+1}], v[{RS}:{RS+1}], v[{RS+2}:{RS+3}]")
        for p in range(4):
            a(f"v_cvt_pk_bf16_f32 v{o+p}, v{R+2*p}, v{R+2*p+1}")
        a(f"ds_write_b128 v9, v[{o}:{o+3}] offset:{1024*ks}")
    BI, AC, FB, MT, CK, OP = 16, [32, 48], 64, 96, 128, 136
    for r in range(4):
        for c in range(4):
            src = T + 2 * r + (c >> 1)
            if c & 1:
                a(f"v_and_b32 v{BI+4*c+r}, v8, v{src}")
            else:
                a(f"v_lshlrev_b32 v{BI+4*c+r}, 16, v{src}")
    a(f"""
    v_mov_b32 v{CK}, 0x3fb8aa3b
    v_mov_b32 v{CK+1}, 0x3fb8aa3b
    v_mov_b32 v{CK+2}, 2.0
    v_mov_b32 v{CK+3}, 2.0
    v_mov_b32 v{CK+4}, -2.0
    v_mov_b32 v{CK+5}, -2.0
    v_mov_b32 v{CK+6}, 1.0
    v_mov_b32 v{CK+7}, 1.0
    s_lshl_b32 s12, s17, 2
    s_mul_i32 s12, s12, 57344
    s_lshl_b32 s13, s19, 11
    s_add_u32 s12, s12, s13
    s_waitcnt lgkmcnt(0)
    s_barrier
    """)

    def bread(q):
        s = q % 8
        return f"ds_read_b128 v[{FB+4*s}:{FB+4*s+3}], v10 offset:{1024*q}"

    def mish(acc):
        out = []
        for r in range(4):
            for cp in range(2):
                pass
        for c in range(4):
            for rp in range(2):
                h = acc + 4 * c + 2 * rp
                t = MT + 4 * (2 * c + rp)
                out.append([f"v_pk_mul_f32 v[{t}:{t+1}], v[{h}:{h+1}], v[{CK}:{CK+1}]",
                            f"v_exp_f32 v{t}, v{t}", f"v_exp_f32 v{t+1}, v{t+1}",
                            f"v_pk_add_f32 v[{t+2}:{t+3}], v[{t}:{t+1}], v[{CK+2}:{CK+3}]",
                            f"v_pk_fma_f32 v[{t}:{t+1}], v[{t}:{t+1}], v[{t+2}:{t+3}], v[{CK+2}:{CK+3}]",
                            f"v_rcp_f32 v{t}, v{t}", f"v_rcp_f32 v{t+1}, v{t+1}",
                            f"v_pk_fma_f32 v[{t}:{t+1}], v[{t}:{t+1}], v[{CK+4}:{CK+5}], v[{CK+6}:{CK+7}]",
                            f"v_pk_mul_f32 v[{t}:{t+1}], v[{t}:{t+1}], v[{h}:{h+1}]"])
        seq = []
        for k in range(0, 8, 2):
            for x, y in zip(out[k], out[k + 1]):
                seq += [x, y]
        for j in range(2):
            for rr in range(2):
                r = 2 * j + rr
                for cp in range(2):
                    c0, c1 = 2 * cp, 2 * cp + 1
                    t0 = MT + 4 * (2 * c0 + (r >> 1)) + (r & 1)
                    t1 = MT + 4 * (2 * c1 + (r >> 1)) + (r & 1)
                    seq.append(f"v_cvt_pk_bf16_f32 v{OP+4*j+2*rr+cp}, v{t0}, v{t1}")
            seq.append(f"buffer_store_dwordx4 v[{OP+4*j}:{OP+4*j+3}], v{VL16}, s[{rH}:{rH+3}], s12 offen offset:{1024*j}")
        seq.append("s_add_u32 s12, s12, 57344")
        return seq

    for q in range(6):
        a(bread(q))
    for tt in range(4):
        acc = AC[tt & 1]
        main = []
        for ks in range(16):
            q = 16 * tt + ks
            grp = []
            rem = min(63, q + 5) - q
            pre = [f"s_waitcnt lgkmcnt({rem})"]
            if tt == 0:
                pre.append(f"s_waitcnt vmcnt({min(63, 60 - 4 * ks + 2)})")
            for c in range(4):
                srcc = f"v[{BI+4*c}:{BI+4*c+3}]" if ks == 0 else f"v[{acc+4*c}:{acc+4*c+3}]"
                m = (f"v_mfma_f32_16x16x32_bf16 v[{acc+4*c}:{acc+4*c+3}], a[{16*ks+4*c}:{16*ks+4*c+3}], "
                     f"v[{FB+4*(q%8)}:{FB+4*(q%8)+3}], {srcc}")
                e = (pre if c == 0 else []) + [m]
                if c == 0 and q + 6 < 64:
                    e.append(bread(q + 6))
                main.append(e)
        side = mish(AC[(tt - 1) & 1]) if tt > 0 else []
        merge(a, main, side, 8, 2)
    a("s_nop 7\ns_nop 1")
    for x in mish(AC[1]):
        a(x)
    return dict(vgpr=512, accum=256, lds=LDS)
```

```python
from common import *

LDS = 49152


def emit_p3(a, last, wg=2):
    sWS, sOUT = 4, 6
    rW, rH, rR, rO = 20, 24, 28, 32
    a(f"""
    s_load_dwordx2 s[{sWS}:{sWS+1}], s[0:1], {KA_WS}
    s_load_dwordx2 s[{sOUT}:{sOUT+1}], s[0:1], {KA_OUT}
    v_lshrrev_b32 v1, 6, v0
    v_and_b32 v2, 63, v0
    s_and_b32 s17, s{wg}, 7
    v_readfirstlane_b32 s16, v1
    s_lshl_b32 s17, s17, 2
    s_bfe_u32 s12, s{wg}, 0x20003
    s_add_u32 s17, s17, s12
    s_lshr_b32 s18, s{wg}, 5
    v_lshlrev_b32 v3, 4, v2
    s_waitcnt lgkmcnt(0)
    """)
    srd_from_ptr(a, rW, sWS, D * F * 2, WS_W2F)
    srd_from_ptr(a, rH, sWS, 128 * 57344, WS_H)
    srd_from_ptr(a, rR, sWS, S * D * 2, WS_X3 if last else WS_X1)
    if last:
        srd_from_ptr(a, rO, sOUT, S * D * 2)
    else:
        srd_from_ptr(a, rO, sWS, S * D * 2, WS_X2)
    a(f"""
    s_mul_i32 s12, s18, 56
    s_mul_i32 s13, s16, 14
    s_add_u32 s12, s12, s13
    s_lshl_b32 s12, s12, 12
    s_mul_i32 s14, s17, {4*57344}
    s_lshl_b32 s13, s13, 10
    s_add_u32 s14, s14, s13
    s_add_u32 s15, s14, 57344
    s_add_u32 s40, s15, 57344
    s_add_u32 s41, s40, 57344
    """)
    ACC, HR, RR = 16, 80, 192
    NS = 7
    hs = [14, 15, 40, 41]

    def loads(k):
        out = []
        for c in range(4):
            out.append(f"buffer_load_dwordx4 a[{16*k+4*c}:{16*k+4*c+3}], v3, s[{rW}:{rW+3}], s12 offen offset:{1024*c}")
        out[-1] += "\ns_add_u32 s12, s12, 4096"
        sl = HR + 16 * (k % NS)
        for tt in range(4):
            x = f"buffer_load_dwordx4 v[{sl+4*tt}:{sl+4*tt+3}], v3, s[{rH}:{rH+3}], s{hs[tt]} offen"
            x += f"\ns_add_u32 s{hs[tt]}, s{hs[tt]}, 1024"
            out.append(x)
        return out

    for k in range(NS):
        for x in loads(k):
            a(x)
    a(f"""
    v_and_b32 v4, 15, v2
    v_lshrrev_b32 v5, 4, v2
    s_lshl_b32 s42, s16, 4
    v_add_u32 v4, s42, v4
    v_lshlrev_b32 v4, 10, v4
    v_lshl_add_u32 v4, v5, 5, v4
    s_lshl_b32 s42, s17, 16
    s_lshl_b32 s43, s18, 7
    s_add_u32 s42, s42, s43
    buffer_load_dwordx4 v[{RR}:{RR+3}], v4, s[{rR}:{rR+3}], s42 offen
    buffer_load_dwordx4 v[{RR+4}:{RR+7}], v4, s[{rR}:{rR+3}], s42 offen offset:16
    """)
    for r in range(64):
        a(f"v_mov_b32 v{ACC+r}, 0")
    for k in range(14):
        later = 8 * (min(13, k + NS - 1) - k) + (2 if k < NS else 0)
        a(f"s_waitcnt vmcnt({later})")
        sl = HR + 16 * (k % NS)
        nxt = loads(k + NS) if k + NS < 14 else []
        n = 0
        for tt in range(4):
            for c in range(4):
                d = ACC + 16 * tt + 4 * c
                a(f"v_mfma_f32_16x16x32_bf16 v[{d}:{d+3}], a[{16*k+4*c}:{16*k+4*c+3}], v[{sl+4*tt}:{sl+4*tt+3}], v[{d}:{d+3}]")
                if nxt and tt * 4 + c >= 4:
                    pass
            if nxt:
                a(nxt[tt])
                a(nxt[4 + tt])
    a(f"""
    s_mul_i32 s12, s16, 12288
    v_add_u32 v5, s12, v3
    s_nop 7
    """)
    for w in range(4):
        lab = a.label("P3_W")
        a(f"s_cmp_eq_u32 s16, {w}\ns_cbranch_scc0 {lab}")
        slot = 0
        for tt in range(4):
            if tt == w:
                continue
            for c in range(4):
                d = ACC + 16 * tt + 4 * c
                a(f"ds_write_b128 v5, v[{d}:{d+3}] offset:{4096*slot + 1024*c}")
            slot += 1
        if w != 0:
            for r in range(16):
                a(f"v_mov_b32 v{ACC+r}, v{ACC+16*w+r}")
        a(f"{lab}:")
    a("s_waitcnt lgkmcnt(0)\ns_barrier")
    RD = 96
    for w in range(4):
        lab = a.label("P3_R")
        a(f"s_cmp_eq_u32 s16, {w}\ns_cbranch_scc0 {lab}")
        i = 0
        for u in range(4):
            if u == w:
                continue
            slot = w if w < u else w - 1
            for c in range(4):
                a(f"ds_read_b128 v[{RD+16*i+4*c}:{RD+16*i+4*c+3}], v3 offset:{12288*u + 4096*slot + 1024*c}")
            i += 1
        a(f"{lab}:")
    a("v_mov_b32 v6, 0xffff0000")
    RF = 160
    for r in range(4):
        for c in range(4):
            src = RR + 2 * r + (c >> 1)
            if c & 1:
                a(f"v_and_b32 v{RF+4*c+r}, v6, v{src}")
            else:
                a(f"v_lshlrev_b32 v{RF+4*c+r}, 16, v{src}")
    for x in range(16):
        a(f"v_add_f32 v{ACC+x}, v{ACC+x}, v{RF+x}")
    for i in range(3):
        a(f"s_waitcnt lgkmcnt({8-4*i})")
        for x in range(16):
            a(f"v_add_f32 v{ACC+x}, v{ACC+x}, v{RD+16*i+x}")
    OP = 176
    for r in range(4):
        for cp in range(2):
            a(f"v_cvt_pk_bf16_f32 v{OP+2*r+cp}, v{ACC+8*cp+r}, v{ACC+8*cp+4+r}")
    a(f"""
    buffer_store_dwordx4 v[{OP}:{OP+3}], v4, s[{rO}:{rO+3}], s42 offen
    buffer_store_dwordx4 v[{OP+4}:{OP+7}], v4, s[{rO}:{rO+3}], s42 offen offset:16
    """)
    return dict(vgpr=200 + 224, accum=200, lds=LDS)
```

```python
import sys, os, importlib
sys.path.insert(0, os.path.dirname(os.path.abspath(__file__)))
from common import *

NAME = "interleave_layers__ssm_conv_h3__dense_activation_mish__prompt"
REF = f"cdna_kernels/{NAME}.s.ref"


def header_comments():
    out = []
    for ln in open(REF).read().split("\n"):
        if ln.startswith("; Override launch"):
            break
        if ln.startswith(";"):
            out.append(ln)
    return out


def build(phases, empty=0):
    launches, bodies, descs = [], [], []
    for label, nwg, fn in phases:
        a = Asm()
        a.uid = 1000 * (len(bodies) + 1)
        done = f"{label}_DONE"
        a(f"s_cmp_ge_u32 s2, {nwg}")
        a(f"s_cbranch_scc1 {done}")
        info = fn(a)
        a(f"{done}:")
        a("s_endpgm")
        bodies.append(kernel_header(label) + a.text())
        descs.append(".p2align 6\n" + kernel_desc(label, info["vgpr"], info["accum"]))
        launches.append(f"; @launch kernel={label} grid=({nwg},1,1) block=(256,1,1) lds={info['lds']}")
    for i in range(empty):
        label = f"empty{i}_kernel"
        bodies.append(kernel_header(label) + "  s_endpgm\n")
        descs.append(".p2align 6\n" + kernel_desc(label, 8, 8))
        launches.append(f"; @launch kernel={label} grid=(256,1,1) block=(256,1,1) lds=0")
    text = "\n".join(header_comments() + launches) + "\n"
    text += '.amdgcn_target "amdgcn-amd-amdhsa--gfx950"\n.text\n'
    text += "".join(bodies)
    text += '.section .rodata,"a"\n' + "".join(descs)
    return text


def default_phases(upto=6):
    import p0
    ph = [("p0_kernel", 256, lambda a: p0.emit_p0(a))]
    if upto >= 2:
        import p1
        ph.append(("p1_kernel", 256, lambda a: p1.emit_p1(a)))
    if upto >= 3:
        import p2
        ph.append(("p2_kernel", 224, lambda a: p2.emit_p2(a, second=False)))
    if upto >= 4:
        import p3
        ph.append(("p3_kernel", 256, lambda a: p3.emit_p3(a, last=False)))
    if upto >= 5:
        ph.append(("p4_kernel", 224, lambda a: p2.emit_p2(a, second=True)))
        ph.append(("p5_kernel", 256, lambda a: p3.emit_p3(a, last=True)))
    return ph


if __name__ == "__main__":
    upto = int(sys.argv[1]) if len(sys.argv) > 1 else 6
    out = sys.argv[2] if len(sys.argv) > 2 else f"cdna_kernels/{NAME}.s"
    empty = int(sys.argv[3]) if len(sys.argv) > 3 else 0
    open(out, "w").write(build(default_phases(upto), empty))
    print("wrote", out, os.path.getsize(out))
```
